```python
import torch

def _softmax(x, axis=-1):
    return torch.softmax(x, dim=axis)

def _gelu(x):
    return torch.nn.functional.gelu(x, approximate='tanh')

def _silu(x):
    return torch.nn.functional.silu(x)

def _sigmoid(x):
    return torch.sigmoid(x)

def _layernorm(x, axis=-1, eps=1e-05):
    m = x.mean(dim=axis, keepdim=True)
    v = x.var(dim=axis, keepdim=True, unbiased=False)
    return (x - m) / torch.sqrt(v + eps)

def _scatter_add(tgt, idx, src, axis=0):
    return tgt.clone().index_add_(axis, idx, src)

def _segment_sum(src, seg, n):
    out = torch.zeros((n,) + src.shape[1:], dtype=src.dtype)
    return out.index_add_(0, seg, src)

def _pad(x, pw):
    flat = tuple((v for pair in reversed(pw) for v in pair))
    return torch.nn.functional.pad(x, flat)
kernel_name = 'adaLN_cond__sliding_block_cached__dense_activation_relu__decode'

def setup_inputs():

    _w = lambda a: (lambda t: t.to(torch.bfloat16) if t.is_floating_point() else t)(torch.as_tensor(a))

    def _A_setup():
        B, Sq, D = (1, 1, 640)
        Hq, Hkv, Sk, Dh = (32, 32, 16384, 128)
        assert Hq % Hkv == 0, (Hq, Hkv)
        return {'x': _w((lambda *s: torch.randn(*s, dtype=torch.bfloat16) * 0.05)(B, Sq, D)), 'k_cache': _w((lambda *s: torch.randn(*s, dtype=torch.bfloat16) * 3.2)(B, Hkv, Sk, Dh)), 'v_cache': _w((lambda *s: torch.randn(*s, dtype=torch.bfloat16) * 0.4)(B, Hkv, Sk, Dh)), 'wq': _w((lambda *s: torch.randn(*s, dtype=torch.bfloat16) * 3.2)(D, Hq * Dh) * D ** (-0.5)), 'wo': _w((lambda *s: torch.randn(*s, dtype=torch.bfloat16) * 0.4)(Hq * Dh, D) * (Hq * Dh) ** (-0.5))}
    _A_in = _A_setup()

    def _B_setup():
        B, S, D, Dff = (1, 1, 640, 1728)
        return {'x': _w((lambda *s: torch.randn(*s, dtype=torch.bfloat16) * 0.05)(B, S, D)), 'w1': _w((lambda *s: torch.randn(*s, dtype=torch.bfloat16) * 0.05)(D, Dff)), 'w2': _w((lambda *s: torch.randn(*s, dtype=torch.bfloat16) * 0.05)(Dff, D))}
    _B_in = _B_setup()
    return {'A_x': _A_in['x'], 'A_k_cache': _A_in['k_cache'], 'A_v_cache': _A_in['v_cache'], 'A_wq': _A_in['wq'], 'A_wo': _A_in['wo'], 'B_x': _B_in['x'], 'B_w1': _B_in['w1'], 'B_w2': _B_in['w2'], 'c': _w((lambda *s: torch.randn(*s, dtype=torch.bfloat16) * 0.1)(1, 640) * 8.0), 'w_mod': _w((lambda *s: torch.randn(*s, dtype=torch.bfloat16) * 0.1)(640, 6 * 640) * 640 ** (-0.5) * 8.0)}

def reference(A_x, A_k_cache, A_v_cache, A_wq, A_wo, B_x, B_w1, B_w2, c, w_mod):

    def _A_ref(x, k_cache, v_cache, wq, wo):
        B, Sq, D = x.shape
        Hq, Dh = (32, 128)
        Hkv, Sk = (k_cache.shape[1], k_cache.shape[2])
        W = min(4096, max(256, Sk // 4))
        rep = Hq // Hkv
        q = (lambda x, *d: x.permute(*d))((x @ wq).reshape(B, Sq, Hq, Dh), 0, 2, 1, 3)
        k = (lambda x, n, axis: torch.repeat_interleave(x, n, dim=axis))(k_cache[:, :, Sk - W:, :], rep, axis=1)
        v = (lambda x, n, axis: torch.repeat_interleave(x, n, dim=axis))(v_cache[:, :, Sk - W:, :], rep, axis=1)
        scores = torch.einsum('bhqd,bhkd->bhqk', q, k) * Dh ** (-0.5)
        p = _softmax(scores, axis=-1)
        o = torch.einsum('bhqk,bhkd->bhqd', p, v)
        return (lambda x, *d: x.permute(*d))(o, 0, 2, 1, 3).reshape(B, Sq, Hq * Dh) @ wo

    def _B_ref(x, w1, w2):
        h = torch.einsum('bsd,df->bsf', x, w1)
        zero = torch.zeros_like(h)
        h = torch.maximum(h, zero)
        return torch.einsum('bsf,fd->bsd', h, w2)
    x = A_x
    mod = (_silu(c) @ w_mod).reshape(c.shape[0], 6, 1, -1)
    sa, ca, ga, sb, cb, gb = (mod[:, 0].clone(), mod[:, 1].clone(), mod[:, 2].clone(), mod[:, 3].clone(), mod[:, 4].clone(), mod[:, 5].clone())
    h = _layernorm(x, axis=-1) * (1 + ca) + sa
    x = x + ga * _A_ref(h, A_k_cache, A_v_cache, A_wq, A_wo)
    h = _layernorm(x, axis=-1) * (1 + cb) + sb
    x = x + gb * _B_ref(h, B_w1, B_w2)
    return x
```

```python
NAME = "adaLN_cond__sliding_block_cached__dense_activation_relu__decode"
HEADER_COMMENT = open("cdna_kernels/" + NAME + ".s.ref").read().split("; Override launch geometry")[0]

KA = dict(x=0, k=8, v=16, wq=24, wo=32, bx=40, w1=48, w2=56, c=64, wmod=72, out=80, dbg=88, ws=96)
SIZES = dict(x=1280, k=134217728, v=134217728, wq=640*4096*2, wo=4096*640*2, bx=1280, w1=640*1728*2, w2=1728*640*2,
             c=1280, wmod=640*3840*2, out=1280, dbg=256, ws=536870912)

class Asm:
    def __init__(self):
        self.lines = []
        self.nlab = 0
        self.descs = []
    def __call__(self, s):
        for l in s.strip("\n").split("\n"):
            self.lines.append("    " + l.strip())
    def label(self, name):
        self.lines.append(name + ":")
    def newlabel(self, p="L"):
        self.nlab += 1
        return f"{p}_{self.nlab}"
    def comment(self, s):
        self.lines.append("    ; " + s)
    def begin_kernel(self, name):
        self.lines += [f".globl {name}", ".p2align 8", f".type {name},@function", f"{name}:"]
    def end_kernel(self, name, vgpr, sgpr=102, accum=None, agpr=0):
        if accum is None:
            accum = (vgpr + 3) // 4 * 4
        nfv = accum + agpr if agpr else vgpr
        self.descs.append(f""".p2align 6
.amdhsa_kernel {name}
  .amdhsa_next_free_vgpr {nfv}
  .amdhsa_next_free_sgpr {sgpr}
  .amdhsa_accum_offset {accum}
  .amdhsa_group_segment_fixed_size 0
  .amdhsa_kernarg_size 104
  .amdhsa_user_sgpr_count 2
  .amdhsa_user_sgpr_kernarg_segment_ptr 1
  .amdhsa_system_sgpr_workgroup_id_x 1
  .amdhsa_float_denorm_mode_32 3
  .amdhsa_float_denorm_mode_16_64 3
.end_amdhsa_kernel""")
    def text(self, launch_lines):
        out = HEADER_COMMENT
        out += "\n".join(launch_lines) + "\n"
        out += '.amdgcn_target "amdgcn-amd-amdhsa--gfx950"\n.text\n'
        out += "\n".join(self.lines) + "\n"
        out += '.section .rodata,"a"\n' + "\n".join(self.descs) + "\n"
        return out
```

```python
import sys
from asmlib import *

G1 = 4096
G2 = G1 + 4 * 3840 * 8
G3 = G2 + 256 * 128 * 8
G4 = G3 + 32 * 8 * 16
G5 = G4 + 256 * 128 * 8
G6 = G5 + 40 * 32 * 16 * 8
G7 = G6 + 640 * 8
G8 = G7 + 640 * 8
WS_END = G8 + 40 * 54 * 16 * 8
TS_OFF = 256 << 20
NTS = 16

L_FLAGQ = 0
L_FLAGML = 4
L_CNTML = 8
L_FLAGMOD = 12
L_FLAGWO = 16
L_FLAGMLP = 20
L_ML = 64
L_MLF = 128
L_Q = 256
L_P1 = 512
L_P2 = 1024
L_RED = 1280
L_CS = 2048
L_X1 = 4608
L_PV = 8192
L_WOR = 12288
L_W1R = 16384
L_WO = 20480
L_W1 = L_WO + 32 * 1024
L_W2 = L_W1 + 40 * 1024
LDS_SIZE = L_W2 + 64 * 1024

NRED = 40
RED0 = 0
NMLP = 54
MLP0 = 64
SPIN = 400000

SEL_LO = 0x05040100
SEL_HI = 0x07060302
LOG2E = 0x3fb8aa3b
SCALE = 0x3db504f3


def gen(fname, DEPTH=4, QWAIT=8, TS=True):
    A = Asm()
    kn = NAME + "_kernel"
    A.begin_kernel(kn)

    P = dict(x=36, k=38, v=40, wq=42, wo=44, bx=46, w1=48, w2=50, c=52, wmod=54, out=56, dbg=58, ws=60)
    WS = "s[16:19]"
    TAG = "s32"
    S_H, S_C = "s33", "s34"
    S_SELLO, S_SELHI = "s62", "s63"
    ts_used = []

    def srd(dst, name):
        A(f"""
        s_mov_b32 s{dst}, s{P[name]}
        s_mov_b32 s{dst+1}, s{P[name]+1}
        s_mov_b32 s{dst+2}, {SIZES[name]}
        s_mov_b32 s{dst+3}, 0x00020000
        """)

    def stamp(i):
        if TS:
            A(f"s_memrealtime s[{64+2*i}:{65+2*i}]")

    def flush_stamps(slots):
        if not TS:
            return
        A("s_waitcnt lgkmcnt(0)")
        A(f"s_lshl_b32 s4, s2, 7")
        A(f"s_add_u32 s4, s4, {TS_OFF}")
        A("s_mov_b64 exec, 1")
        A("v_mov_b32 v1, 0")
        for i in slots:
            A(f"v_mov_b32 v2, s{64+2*i}")
            A(f"v_mov_b32 v3, s{65+2*i}")
            A(f"buffer_store_dwordx2 v[2:3], v1, {WS}, s4 offen offset:{8*i}")
            A("s_nop 1")
        A("s_mov_b64 exec, -1")

    def lds_spin(addr_v, off, cmp_imm, tmpv, ge=False):
        lp = A.newlabel("Lspin"); ok = A.newlabel("Lok")
        A("s_mov_b32 s5, 0")
        A.label(lp)
        A(f"ds_read_b32 v{tmpv}, v{addr_v} offset:{off}")
        A("s_waitcnt lgkmcnt(0)")
        A(f"v_readfirstlane_b32 s4, v{tmpv}")
        A(f"s_cmp_eq_u32 s4, {cmp_imm}")
        A(f"s_cbranch_scc1 {ok}")
        A("s_sleep 1")
        A("s_add_u32 s5, s5, 1")
        A(f"s_cmp_lt_u32 s5, {SPIN*4}")
        A(f"s_cbranch_scc1 {lp}")
        A.label(ok)

    def poll(loads, tagregs, sleep=0):
        lp = A.newlabel("Lpoll"); ok = A.newlabel("Lok")
        A("s_mov_b32 s5, 0")
        A.label(lp)
        for l in loads:
            A(l)
        A("s_waitcnt vmcnt(0)")
        first = True
        for t in tagregs:
            if isinstance(t, tuple):
                r, m = t
                A(f"v_cmp_ne_u32 s[6:7], {TAG}, v{r}")
                A(f"s_and_b64 s[6:7], s[6:7], {m}")
            else:
                A(f"v_cmp_ne_u32 s[6:7], {TAG}, v{t}")
            if first:
                A("s_mov_b64 s[30:31], s[6:7]")
                first = False
            else:
                A("s_or_b64 s[30:31], s[30:31], s[6:7]")
        A("s_cmp_eq_u64 s[30:31], 0")
        A(f"s_cbranch_scc1 {ok}")
        if sleep:
            A(f"s_sleep {sleep}")
        A("s_add_u32 s5, s5, 1")
        A(f"s_cmp_lt_u32 s5, {SPIN}")
        A(f"s_cbranch_scc1 {lp}")
        A.label(ok)

    def rnd(dst, src):
        A(f"v_cvt_pk_bf16_f32 v{dst}, v{src}, v{src}")
        A(f"v_and_b32 v{dst}, 0xffff0000, v{dst}")

    def rnd2(d0, d1, s0, s1, t):
        A(f"v_cvt_pk_bf16_f32 v{t}, v{s0}, v{s1}")
        A(f"v_lshlrev_b32 v{d0}, 16, v{t}")
        A(f"v_and_b32 v{d1}, 0xffff0000, v{t}")

    def allred_row(regs, op="v_add_f32", steps=(8, 4, 2, 1)):
        for s in steps:
            A("s_nop 1")
            for r in regs:
                A(f"{op}_dpp v{r}, v{r}, v{r} row_ror:{s} row_mask:0xf bank_mask:0xf")

    def allred_x16_32(reg, tmp, op="v_add_f32"):
        A(f"v_mov_b32 v{tmp}, v{reg}")
        A("s_nop 1")
        A(f"v_permlane16_swap_b32 v{reg}, v{tmp}")
        A("s_nop 1")
        A(f"{op} v{reg}, v{reg}, v{tmp}")
        A(f"v_mov_b32 v{tmp}, v{reg}")
        A("s_nop 1")
        A(f"v_permlane32_swap_b32 v{reg}, v{tmp}")
        A("s_nop 1")
        A(f"{op} v{reg}, v{reg}, v{tmp}")

    def red8to2(acc):
        A("s_nop 2")
        for k in range(4):
            A(f"v_permlane32_swap_b32 v{acc[k]}, v{acc[k+4]}")
        A("s_nop 1")
        for k in range(4):
            A(f"v_add_f32 v{acc[k]}, v{acc[k]}, v{acc[k+4]}")
        A("s_nop 1")
        for k in range(2):
            A(f"v_permlane16_swap_b32 v{acc[k]}, v{acc[k+2]}")
        A("s_nop 1")
        for k in range(2):
            A(f"v_add_f32 v{acc[k]}, v{acc[k]}, v{acc[k+2]}")

    def gemv_pair(acc, ra, rb, mult, t0, t1, first=False):
        for r in range(4):
            ta, tb = (t0, t1) if r % 2 == 0 else (t0 + 1, t1 + 1)
            A(f"v_perm_b32 v{ta}, v{rb+r}, v{ra+r}, {S_SELLO}")
            A(f"v_perm_b32 v{tb}, v{rb+r}, v{ra+r}, {S_SELHI}")
            c0 = "0" if first else f"v{acc[2*r]}"
            c1 = "0" if first else f"v{acc[2*r+1]}"
            A(f"v_dot2_f32_bf16 v{acc[2*r]}, v{ta}, v{mult}, {c0}")
            A(f"v_dot2_f32_bf16 v{acc[2*r+1]}, v{tb}, v{mult}, {c1}")

    def divide(dst, num, den, t0, t1):
        A(f"v_rcp_f32 v{t0}, v{den}")
        A("s_nop 0")
        A(f"v_mul_f32 v{dst}, v{num}, v{t0}")
        A(f"v_fma_f32 v{t1}, -v{dst}, v{den}, v{num}")
        A(f"v_fma_f32 v{dst}, v{t1}, v{t0}, v{dst}")

    A(f"""
    s_cmp_ge_u32 s2, 256
    s_cbranch_scc1 L_end
    """)
    stamp(0)
    A(f"""
    s_load_dwordx16 s[36:51], s[0:1], 0
    s_load_dwordx8 s[52:59], s[0:1], 64
    s_load_dwordx2 s[60:61], s[0:1], 96
    v_lshrrev_b32 v1, 6, v0
    v_and_b32 v0, 63, v0
    s_nop 0
    v_readfirstlane_b32 s3, v1
    s_lshr_b32 {S_H}, s2, 3
    s_and_b32 {S_C}, s2, 7
    s_mov_b32 {S_SELLO}, {SEL_LO}
    s_mov_b32 {S_SELHI}, {SEL_HI}
    s_waitcnt lgkmcnt(0)
    s_load_dword {TAG}, s[60:61], 0
    """)
    srd(16, "ws")
    A(f"""
    s_cmp_ge_u32 s3, 8
    s_cbranch_scc1 L_comm
    """)

    KR, VR = 8, 72
    QR = 136
    SC = 140
    PK = 156
    ACC = list(range(140, 148))
    T0 = 148
    srd(8, "k")
    srd(12, "v")
    A(f"""
    s_lshl_b32 s20, {S_H}, 22
    s_lshl_b32 s21, {S_C}, 17
    s_add_u32 s20, s20, s21
    s_add_u32 s20, s20, {12288*256}
    s_lshl_b32 s21, s3, 14
    s_add_u32 s20, s20, s21
    s_add_u32 s23, s2, s3
    v_lshlrev_b32 v1, 4, v0
    v_mov_b32 v2, 0
    """)
    for t in range(4):
        A(f"s_add_u32 s4, s23, {t}")
        A(f"s_and_b32 s4, s4, 3")
        A(f"s_lshl_b32 s4, s4, 12")
        A(f"s_add_u32 s{24+t}, s20, s4")
    A("s_barrier")

    def issue(i):
        srdn = "s[8:11]" if i < 16 else "s[12:15]"
        j = i % 16
        r = (KR if i < 16 else VR) + 4 * j
        A(f"buffer_load_dwordx4 v[{r}:{r+3}], v1, {srdn}, s{24+j//4} offen offset:{(j%4)*1024} nt")

    def qk_block(nv_issued):
        lds_spin(2, L_FLAGQ, 1, 3)
        A(f"s_add_u32 {TAG}, {TAG}, 1")
        stamp(5)
        A(f"v_and_b32 v3, 15, v0")
        A(f"v_lshlrev_b32 v3, 4, v3")
        A(f"ds_read_b128 v[{QR}:{QR+3}], v3 offset:{L_Q}")
        A(f"s_waitcnt vmcnt({nv_issued}) lgkmcnt(0)")
        for r in range(4):
            for j in range(16):
                c = "0" if r == 0 else f"v{SC+j}"
                A(f"v_dot2_f32_bf16 v{SC+j}, v{KR+4*j+r}, v{QR+r}, {c}")
        A("s_nop 2")
        allred_row([SC + j for j in range(16)])
        for i in range(8):
            a, b = SC + 2 * i, SC + 2 * i + 1
            A(f"v_cvt_pk_bf16_f32 v3, v{a}, v{b}")
            A(f"v_lshlrev_b32 v{a}, 16, v3")
            A(f"v_and_b32 v{b}, 0xffff0000, v3")
            A(f"v_mul_f32 v{a}, {SCALE}, v{a}")
            A(f"v_mul_f32 v{b}, {SCALE}, v{b}")
            A(f"v_cvt_pk_bf16_f32 v3, v{a}, v{b}")
            A(f"v_lshlrev_b32 v{a}, 16, v3")
            A(f"v_and_b32 v{b}, 0xffff0000, v3")
        A(f"v_max_f32 v4, v{SC}, v{SC+1}")
        for i in range(1, 8):
            A(f"v_max3_f32 v4, v4, v{SC+2*i}, v{SC+2*i+1}")
        allred_x16_32(4, 5, "v_max_f32")
        for j in range(16):
            A(f"v_sub_f32 v{SC+j}, v{SC+j}, v4")
        for j in range(16):
            A(f"v_mul_f32 v{SC+j}, {LOG2E}, v{SC+j}")
        for j in range(16):
            A(f"v_exp_f32 v{SC+j}, v{SC+j}")
        A("s_nop 0")
        A(f"v_add_f32 v5, v{SC}, v{SC+1}")
        for j in range(2, 16):
            A(f"v_add_f32 v5, v5, v{SC+j}")
        allred_x16_32(5, 6, "v_add_f32")
        A(f"s_lshl_b32 s4, s3, 3")
        A(f"v_mov_b32 v3, s4")
        A(f"ds_write_b64 v3, v[4:5] offset:{L_ML}")
        A("s_waitcnt lgkmcnt(0)")
        A("v_mov_b32 v3, 1")
        A("s_mov_b64 exec, 1")
        A(f"ds_add_u32 v2, v3 offset:{L_CNTML}")
        A("s_mov_b64 exec, -1")

    for i in range(32):
        if i >= DEPTH:
            A(f"s_waitcnt vmcnt({DEPTH-1})")
        issue(i)
        if i == 16 + QWAIT - 1:
            qk_block(QWAIT)
    lds_spin(2, L_FLAGML, 1, 3)
    A(f"ds_read_b64 v[6:7], v2 offset:{L_MLF}")
    A("s_waitcnt lgkmcnt(0)")
    A(f"""
    v_sub_f32 v4, v4, v6
    v_mul_f32 v4, {LOG2E}, v4
    v_exp_f32 v4, v4
    s_nop 0
    v_mul_f32 v4, v4, v7
    """)
    for j in range(16):
        A(f"v_mul_f32 v{SC+j}, v{SC+j}, v4")
    for i in range(8):
        A(f"v_cvt_pk_bf16_f32 v{PK+i}, v{SC+2*i}, v{SC+2*i+1}")
    for i in range(8):
        A(f"s_waitcnt vmcnt({14-2*i})")
        gemv_pair(ACC, VR + 8 * i, VR + 8 * i + 4, PK + i, T0, T0 + 2, first=(i == 0))
    stamp(7)
    red8to2(ACC)
    A(f"""
    v_and_b32 v3, 15, v0
    v_lshlrev_b32 v3, 3, v3
    v_lshrrev_b32 v4, 5, v0
    v_lshl_add_u32 v3, v4, 2, v3
    v_bfe_u32 v4, v0, 4, 1
    v_lshl_add_u32 v3, v4, 1, v3
    s_lshl_b32 s4, s3, 9
    v_lshl_add_u32 v4, v3, 2, s4
    ds_write_b64 v4, v[{ACC[0]}:{ACC[1]}] offset:{L_PV}
    s_waitcnt lgkmcnt(0)
    s_barrier
    """)
    lskip = A.newlabel("Lskip")
    A(f"s_cmp_lg_u32 s3, 0")
    A(f"s_cbranch_scc1 {lskip}")
    A(f"v_lshlrev_b32 v4, 3, v0")
    for w in range(8):
        A(f"ds_read_b64 v[{8+2*w}:{9+2*w}], v4 offset:{L_PV + 512*w}")
    A("s_waitcnt lgkmcnt(0)")
    for w in range(1, 8):
        A(f"v_pk_add_f32 v[8:9], v[8:9], v[{8+2*w}:{9+2*w}]")
    A(f"""
    v_mov_b32 v10, v9
    v_mov_b32 v9, {TAG}
    v_mov_b32 v11, {TAG}
    s_lshl_b32 s4, s2, 10
    s_add_u32 s4, s4, {G4}
    buffer_store_dwordx4 v[8:11], v1, {WS}, s4 offen sc1
    """)
    A.label(lskip)
    lds_spin(2, L_FLAGWO, 1, 4)
    A(f"s_lshl_b32 s4, s3, 12")
    A(f"v_add_u32 v4, s4, v1")
    for i in range(4):
        A(f"ds_read_b128 v[{24+4*i}:{27+4*i}], v4 offset:{L_WO + 1024*i}")
    A(f"""
    v_and_b32 v4, 7, v0               ; c'
    v_lshlrev_b32 v4, 10, v4          ; c'*128*8
    v_bfe_u32 v5, v0, 3, 1            ; i
    v_lshlrev_b32 v5, 2, v5
    v_lshrrev_b32 v6, 4, v0           ; g
    v_add_u32 v5, v5, v6              ; p
    v_lshl_add_u32 v4, v5, 4, v4      ; + p*2*8
    s_lshl_b32 s4, {S_H}, 13          ; h*8*128*8
    s_lshl_b32 s6, s3, 7              ; w*16*8
    s_add_u32 s4, s4, s6
    s_add_u32 s21, s4, {G4}
    """)
    poll([f"buffer_load_dwordx4 v[8:11], v4, {WS}, s21 offen sc1"], [9, 11])
    stamp(8)
    for mode in ("quad_perm:[1,0,3,2]", "quad_perm:[2,3,0,1]", "row_half_mirror"):
        A("s_nop 1")
        A(f"v_add_f32_dpp v8, v8, v8 {mode} row_mask:0xf bank_mask:0xf")
        A(f"v_add_f32_dpp v10, v10, v10 {mode} row_mask:0xf bank_mask:0xf")
    A(f"""
    s_nop 0
    v_cvt_pk_bf16_f32 v8, v8, v10
    s_nop 1
    v_mov_b32_dpp v9, v8 row_ror:8 row_mask:0xf bank_mask:0xf
    v_and_b32 v5, 8, v0
    v_cmp_eq_u32 vcc, 0, v5
    s_nop 1
    v_cndmask_b32 v10, v9, v8, vcc     ; mult i=0
    v_cndmask_b32 v11, v8, v9, vcc     ; mult i=1
    s_waitcnt lgkmcnt(0)
    """)
    gemv_pair(ACC, 24, 28, 10, T0, T0 + 2, first=True)
    gemv_pair(ACC, 32, 36, 11, T0, T0 + 2)
    red8to2(ACC)
    A(f"""
    s_lshl_b32 s4, s3, 9
    v_lshl_add_u32 v4, v3, 2, s4
    ds_write_b64 v4, v[{ACC[0]}:{ACC[1]}] offset:{L_WOR}
    s_waitcnt lgkmcnt(0)
    s_barrier
    """)
    lskip = A.newlabel("Lskip")
    A(f"s_cmp_lg_u32 s3, 0")
    A(f"s_cbranch_scc1 {lskip}")
    A(f"v_lshlrev_b32 v4, 3, v0")
    for w in range(8):
        A(f"ds_read_b64 v[{8+2*w}:{9+2*w}], v4 offset:{L_WOR + 512*w}")
    A("s_waitcnt lgkmcnt(0)")
    for w in range(1, 8):
        A(f"v_pk_add_f32 v[8:9], v[8:9], v[{8+2*w}:{9+2*w}]")
    A(f"""
    v_mov_b32 v10, v9
    v_mov_b32 v9, {TAG}
    v_mov_b32 v11, {TAG}
    v_lshrrev_b32 v4, 3, v0
    v_lshlrev_b32 v4, 12, v4          ; (l/8)*32*16*8
    v_and_b32 v5, 7, v0
    v_lshl_add_u32 v4, v5, 4, v4
    s_mul_i32 s4, {S_C}, {5*4096}
    s_lshl_b32 s6, {S_H}, 7
    s_add_u32 s4, s4, s6
    s_add_u32 s4, s4, {G5}
    v_cmp_gt_u32 vcc, 40, v0
    s_and_saveexec_b64 s[6:7], vcc
    buffer_store_dwordx4 v[8:11], v4, {WS}, s4 offen sc1
    s_mov_b64 exec, s[6:7]
    """)
    stamp(9)
    A.label(lskip)
    A(f"""
    s_sub_u32 s35, s2, {MLP0}
    s_cmp_lt_u32 s35, {NMLP}
    s_cbranch_scc1 L_mlp
    s_cmp_lg_u32 s3, 0
    s_cbranch_scc1 L_end
    s_sub_u32 s35, s2, {RED0}
    s_cmp_lt_u32 s35, {NRED}
    s_cbranch_scc1 L_red
    """)
    stamp(15)
    flush_stamps([0, 5, 7, 8, 9, 15])
    A("s_branch L_end")

    A.label("L_red")
    lds_spin(2, L_FLAGMOD, 1, 4)
    A(f"""
    v_and_b32 v5, 7, v0
    v_lshlrev_b32 v5, 3, v5
    ds_read_b64 v[40:41], v5 offset:{L_RED}         ; ga
    ds_read_b64 v[42:43], v5 offset:{L_RED+64}      ; gb
    ds_read_b64 v[44:45], v5 offset:{L_RED+128}     ; x
    s_lshl_b32 s21, s35, 12
    s_add_u32 s21, s21, {G5}
    """)
    poll([f"buffer_load_dwordx4 v[{8+4*i}:{11+4*i}], v1, {WS}, s21 offen offset:{1024*i} sc1" for i in range(4)],
         [9, 11, 13, 15, 17, 19, 21, 23])
    for i in range(1, 4):
        A(f"v_add_f32 v8, v8, v{8+4*i}")
        A(f"v_add_f32 v10, v10, v{10+4*i}")
    allred_row([8, 10], steps=(8,))
    allred_x16_32(8, 12)
    allred_x16_32(10, 12)
    A("s_waitcnt lgkmcnt(0)")
    rnd2(8, 10, 8, 10, 12)
    A("v_mul_f32 v8, v8, v40")
    A("v_mul_f32 v10, v10, v41")
    rnd2(8, 10, 8, 10, 12)
    A("v_add_f32 v8, v8, v44")
    A("v_add_f32 v10, v10, v45")
    rnd2(46, 47, 8, 10, 12)
    A(f"""
    v_mov_b32 v8, v46
    v_mov_b32 v9, {TAG}
    v_mov_b32 v10, v47
    v_mov_b32 v11, {TAG}
    s_lshl_b32 s4, s35, 7
    s_add_u32 s4, s4, {G6}
    s_mov_b64 exec, 0xff
    buffer_store_dwordx4 v[8:11], v1, {WS}, s4 offen sc1
    s_mov_b64 exec, -1
    """)
    stamp(10)
    A(f"""
    s_mul_i32 s21, s35, {54*128}
    s_add_u32 s21, s21, {G8}
    v_cmp_gt_u32 s[28:29], 48, v0
    v_mov_b32 v4, 0x7fffff00
    s_nop 0
    v_cndmask_b32 v4, v4, v1, s[28:29]
    """)
    lds = [f"buffer_load_dwordx4 v[{8+4*i}:{11+4*i}], v1, {WS}, s21 offen offset:{1024*i} sc1" for i in range(4)]
    A(f"s_add_u32 s22, s21, 4096")
    lds += [f"buffer_load_dwordx4 v[{24+4*i}:{27+4*i}], v1, {WS}, s22 offen offset:{1024*i} sc1" for i in range(2)]
    lds += [f"buffer_load_dwordx4 v[32:35], v4, {WS}, s22 offen offset:2048 sc1"]
    poll(lds, [9, 11, 13, 15, 17, 19, 21, 23, 25, 27, 29, 31, (33, "s[28:29]"), (35, "s[28:29]")])
    for i in range(1, 7):
        A(f"v_add_f32 v8, v8, v{8+4*i}")
        A(f"v_add_f32 v10, v10, v{10+4*i}")
    allred_row([8, 10], steps=(8,))
    allred_x16_32(8, 12)
    allred_x16_32(10, 12)
    rnd2(8, 10, 8, 10, 12)
    A("v_mul_f32 v8, v8, v42")
    A("v_mul_f32 v10, v10, v43")
    rnd2(8, 10, 8, 10, 12)
    A("v_add_f32 v8, v8, v46")
    A("v_add_f32 v10, v10, v47")
    A("v_cvt_pk_bf16_f32 v8, v8, v10")
    srd(20, "out")
    A(f"""
    v_lshlrev_b32 v4, 2, v0
    s_lshl_b32 s4, s35, 5
    s_mov_b64 exec, 0xff
    buffer_store_dword v8, v4, s[20:23], s4 offen
    s_mov_b64 exec, -1
    """)
    l2 = A.newlabel("Lskip")
    A(f"""
    s_cmp_lg_u32 s35, 0
    s_cbranch_scc1 {l2}
    v_mov_b32 v8, {TAG}
    s_mov_b64 exec, 1
    buffer_store_dword v8, v2, {WS}, 0 offen
    s_mov_b64 exec, -1
    """)
    A.label(l2)
    stamp(13)
    stamp(15)
    flush_stamps([0, 5, 7, 8, 9, 10, 13, 15])
    A("s_branch L_end")

    A.label("L_mlp")
    W1R, W2R = 48, 72
    lds_spin(2, L_FLAGMLP, 1, 4)
    lds_spin(2, L_FLAGMOD, 1, 4)
    A(f"s_mul_i32 s4, s3, {5*1024}")
    A(f"v_add_u32 v4, s4, v1")
    for i in range(5):
        A(f"ds_read_b128 v[{W1R+4*i}:{W1R+3+4*i}], v4 offset:{L_W1 + 1024*i}")
    A(f"s_lshl_b32 s4, s3, 13")
    A(f"s_add_u32 s4, s4, {L_W2}")
    A(f"v_add_u32 v4, s4, v1")
    for i in range(8):
        A(f"ds_read_b128 v[{W2R+4*i}:{W2R+3+4*i}], v4 offset:{1024*i}")
    A(f"""
    v_lshrrev_b32 v5, 2, v0
    s_mul_i32 s4, s3, 80
    v_add_u32 v5, s4, v5
    v_lshlrev_b32 v5, 2, v5
    """)
    for i in range(5):
        A(f"ds_read_b32 v{104+i}, v5 offset:{L_CS + 64*i}")
    A("s_waitcnt lgkmcnt(0)")
    A(f"s_mov_b32 s21, {G6}")
    A(f"s_mov_b32 s22, {G6+4096}")
    lds = [f"buffer_load_dwordx4 v[{8+4*i}:{11+4*i}], v1, {WS}, s21 offen offset:{1024*i} sc1" for i in range(4)]
    lds += [f"buffer_load_dwordx4 v[24:27], v1, {WS}, s22 offen sc1"]
    poll(lds, [9, 11, 13, 15, 17, 19, 21, 23, 25, 27])
    stamp(11)
    A("v_lshlrev_b32 v4, 3, v0")
    for i in range(5):
        A(f"v_mov_b32 v{9+4*i}, v{10+4*i}")
    for i in range(5):
        A(f"ds_write_b64 v4, v[{8+4*i}:{9+4*i}] offset:{L_X1 + 512*i}")
    A("v_add_f32 v28, v8, v9")
    for i in range(1, 5):
        A(f"v_add_f32 v28, v28, v{8+4*i}")
        A(f"v_add_f32 v28, v28, v{9+4*i}")
    allred_row([28])
    allred_x16_32(28, 29)
    A(f"v_mul_f32 v28, 0x3acccccd, v28")
    A("s_waitcnt lgkmcnt(0)")
    for i in range(5):
        A(f"ds_read_b32 v{110+i}, v5 offset:{L_X1 + 64*i}")
    first = True
    for i in range(5):
        for r in (8 + 4 * i, 9 + 4 * i):
            A(f"v_sub_f32 v30, v{r}, v28")
            if first:
                A("v_mul_f32 v29, v30, v30")
                first = False
            else:
                A("v_fmac_f32 v29, v30, v30")
    allred_row([29])
    allred_x16_32(29, 30)
    A(f"v_mul_f32 v29, 0x3acccccd, v29")
    rnd2(28, 29, 28, 29, 30)
    A("v_add_f32 v29, 0x3727c5ac, v29")
    rnd(29, 29)
    A("v_sqrt_f32 v29, v29")
    A("s_nop 0")
    rnd(29, 29)
    A("v_rcp_f32 v30, v29")
    A("s_waitcnt lgkmcnt(0)")
    for i in range(5):
        x = 110 + i
        A(f"v_sub_f32 v{x}, v{x}, v28")
        rnd(x, x)
        A(f"v_mul_f32 v31, v{x}, v30")
        A(f"v_fma_f32 v32, -v31, v29, v{x}")
        A(f"v_fma_f32 v{x}, v32, v30, v31")
        rnd(x, x)
        A(f"v_lshlrev_b32 v31, 16, v{104+i}")
        A(f"v_and_b32 v32, 0xffff0000, v{104+i}")
        A(f"v_mul_f32 v{x}, v{x}, v31")
        rnd(x, x)
        A(f"v_add_f32 v{x}, v{x}, v32")
    A("v_cvt_pk_bf16_f32 v31, v110, v111")
    A("v_cvt_pk_bf16_f32 v32, v112, v113")
    A("v_cvt_pk_bf16_f32 v33, v114, v114")
    A("v_and_b32 v34, 0xffff0000, v33")
    A("v_and_b32 v33, 0xffff, v33")
    gemv_pair(ACC, W1R, W1R + 4, 31, T0, T0 + 2, first=True)
    gemv_pair(ACC, W1R + 8, W1R + 12, 32, T0, T0 + 2)
    for r in range(4):
        A(f"v_dot2_f32_bf16 v{ACC[2*r]}, v{W1R+16+r}, v33, v{ACC[2*r]}")
        A(f"v_dot2_f32_bf16 v{ACC[2*r+1]}, v{W1R+16+r}, v34, v{ACC[2*r+1]}")
    red8to2(ACC)
    allred_row([ACC[0], ACC[1]], steps=(8, 4))
    A(f"""
    v_and_b32 v4, 3, v0
    v_lshlrev_b32 v4, 3, v4
    v_lshrrev_b32 v6, 5, v0
    v_lshl_add_u32 v4, v6, 2, v4
    v_bfe_u32 v6, v0, 4, 1
    v_lshl_add_u32 v4, v6, 1, v4
    s_lshl_b32 s4, s3, 7
    v_lshl_add_u32 v4, v4, 2, s4
    ds_write_b64 v4, v[{ACC[0]}:{ACC[1]}] offset:{L_W1R}
    s_waitcnt lgkmcnt(0)
    s_barrier
    """)
    A(f"""
    v_and_b32 v4, 7, v0
    v_lshlrev_b32 v4, 7, v4            ; wave'*128 B
    v_bfe_u32 v6, v0, 3, 1
    v_lshl_add_u32 v4, v6, 6, v4       ; + (2*(sub>>3))*8*4
    v_lshrrev_b32 v6, 4, v0
    v_lshl_add_u32 v4, v6, 3, v4       ; + 2g*4
    ds_read_b64 v[8:9], v4 offset:{L_W1R}
    ds_read_b64 v[10:11], v4 offset:{L_W1R+32}
    s_waitcnt lgkmcnt(0)
    """)
    for mode in ("quad_perm:[1,0,3,2]", "quad_perm:[2,3,0,1]", "row_half_mirror"):
        A("s_nop 1")
        for r in (8, 9, 10, 11):
            A(f"v_add_f32_dpp v{r}, v{r}, v{r} {mode} row_mask:0xf bank_mask:0xf")
    A("s_nop 0")
    for r in (8, 9, 10, 11):
        A(f"v_max_f32 v{r}, 0, v{r}")
    A(f"""
    v_cvt_pk_bf16_f32 v8, v8, v9
    v_cvt_pk_bf16_f32 v9, v10, v11
    s_nop 1
    v_mov_b32_dpp v10, v8 row_ror:8 row_mask:0xf bank_mask:0xf
    v_mov_b32_dpp v11, v9 row_ror:8 row_mask:0xf bank_mask:0xf
    v_and_b32 v6, 8, v0
    v_cmp_eq_u32 vcc, 0, v6
    s_nop 1
    v_cndmask_b32 v12, v10, v8, vcc     ; i=0
    v_cndmask_b32 v13, v11, v9, vcc     ; i=1
    v_cndmask_b32 v14, v8, v10, vcc     ; i=2
    v_cndmask_b32 v15, v9, v11, vcc     ; i=3
    """)
    for i in range(4):
        gemv_pair(ACC, W2R + 8 * i, W2R + 8 * i + 4, 12 + i, T0, T0 + 2, first=(i == 0))
    red8to2(ACC)
    A(f"""
    s_mul_i32 s4, s3, 80
    v_add_u32 v4, s4, v3
    v_lshrrev_b32 v5, 4, v4            ; r
    v_and_b32 v4, 15, v4
    v_lshlrev_b32 v4, 3, v4
    s_mov_b32 s4, {54*128}
    v_mul_lo_u32 v5, v5, s4
    v_add_u32 v4, v4, v5
    s_lshl_b32 s4, s35, 7
    s_add_u32 s4, s4, {G8}
    v_mov_b32 v8, v{ACC[0]}
    v_mov_b32 v9, {TAG}
    v_mov_b32 v10, v{ACC[1]}
    v_mov_b32 v11, {TAG}
    v_and_b32 v5, 15, v0
    v_cmp_gt_u32 vcc, 10, v5
    s_and_saveexec_b64 s[6:7], vcc
    buffer_store_dwordx4 v[8:11], v4, {WS}, s4 offen sc1
    s_mov_b64 exec, s[6:7]
    """)
    stamp(12)
    stamp(15)
    l2 = A.newlabel("Lskip")
    A("s_cmp_lg_u32 s3, 0")
    A(f"s_cbranch_scc1 L_end")
    flush_stamps([0, 5, 7, 8, 9, 11, 12, 15])
    A("s_branch L_end")

    A.label("L_comm")
    A(f"""
    v_lshlrev_b32 v1, 4, v0
    v_mov_b32 v2, 0
    s_cmp_eq_u32 s3, 9
    s_cbranch_scc1 L_w9
    s_cmp_eq_u32 s3, 10
    s_cbranch_scc1 L_w10
    s_cmp_eq_u32 s3, 11
    s_cbranch_scc1 L_w11
    """)
    WR = 8
    MU = 88
    CACC = list(range(100, 108))
    CT = 108
    srd(8, "wmod")
    srd(12, "c")
    srd(20, "wo")
    lnop1 = A.newlabel("Lnop1")
    A(f"""
    s_mov_b32 s4, {(1 << 32) // 60 + 1}
    s_mul_hi_u32 s24, s2, s4           ; rg
    s_mul_i32 s4, s24, 60
    s_sub_u32 s25, s2, s4              ; strip
    s_cmp_ge_u32 s2, 240
    s_cbranch_scc1 L_w8_nop1a
    s_mul_i32 s4, s24, 320
    v_lshlrev_b32 v3, 1, v0
    buffer_load_ushort v4, v3, s[12:15], s4 offen
    buffer_load_ushort v5, v3, s[12:15], s4 offen offset:128
    buffer_load_ushort v6, v3, s[12:15], s4 offen offset:256
    ; weight offsets: (l/8)*7680 + (l%8)*16
    v_lshrrev_b32 v3, 3, v0
    v_mul_u32_u24 v3, 7680, v3
    v_and_b32 v7, 7, v0
    v_lshl_add_u32 v3, v7, 4, v3
    s_mul_i32 s26, s24, {160*7680}
    s_lshl_b32 s4, s25, 7
    s_add_u32 s26, s26, s4
    """)
    for i in range(20):
        A(f"buffer_load_dwordx4 v[{WR+4*i}:{WR+3+4*i}], v3, s[8:11], s26 offen nt")
        A(f"s_add_u32 s26, s26, {8*7680}")
    A.label("L_w8_nop1a")
    A("s_barrier")
    A(f"""
    s_cmp_ge_u32 s2, 240
    s_cbranch_scc1 {lnop1}
    s_waitcnt vmcnt(20)
    """)
    for r in (4, 5, 6):
        A(f"""
        v_lshlrev_b32 v{r}, 16, v{r}
        v_mul_f32 v98, 0xbfb8aa3b, v{r}
        v_exp_f32 v98, v98
        s_nop 0
        v_add_f32 v98, 1.0, v98
        """)
        A(f"""
        v_rcp_f32 v99, v98
        s_nop 0
        v_mul_f32 v7, v{r}, v99
        v_fma_f32 v{CT}, -v7, v98, v{r}
        v_fma_f32 v{r}, v{CT}, v99, v7
        v_cvt_pk_bf16_f32 v{r}, v{r}, v{r}
        """)
    A(f"""
    v_and_b32 v7, 7, v0
    v_mul_u32_u24 v7, 20, v7
    v_lshrrev_b32 v98, 3, v0
    v_add_u32 v7, v7, v98
    v_lshlrev_b32 v7, 1, v7            ; bytes
    ds_write_b16 v7, v4 offset:{L_P1}
    ds_write_b16 v7, v5 offset:{L_P1+16}
    s_mov_b32 exec_lo, -1
    s_mov_b32 exec_hi, 0
    ds_write_b16 v7, v6 offset:{L_P1+32}
    s_mov_b64 exec, -1
    v_lshrrev_b32 v7, 3, v0
    v_mul_u32_u24 v7, 40, v7
    s_waitcnt lgkmcnt(0)
    """)
    for i in range(5):
        A(f"ds_read_b64 v[{MU+2*i}:{MU+2*i+1}], v7 offset:{L_P1+8*i}")
    A("s_waitcnt lgkmcnt(0)")
    for j in range(10):
        A(f"s_waitcnt vmcnt({18-2*j})")
        gemv_pair(CACC, WR + 8 * j, WR + 8 * j + 4, MU + j, CT, CT + 2, first=(j == 0))
    red8to2(CACC)
    allred_row([CACC[0], CACC[1]], steps=(8,))
    A(f"""
    v_and_b32 v3, 7, v0
    v_lshlrev_b32 v3, 3, v3
    v_lshrrev_b32 v4, 5, v0
    v_lshl_add_u32 v3, v4, 2, v3
    v_bfe_u32 v4, v0, 4, 1
    v_lshl_add_u32 v3, v4, 1, v3
    v_lshlrev_b32 v3, 3, v3
    s_mul_i32 s4, s24, {3840*8}
    s_lshl_b32 s6, s25, 9
    s_add_u32 s4, s4, s6
    s_add_u32 s4, s4, {G1}
    s_waitcnt lgkmcnt(0)
    s_add_u32 {TAG}, {TAG}, 1
    v_mov_b32 v4, v{CACC[0]}
    v_mov_b32 v5, {TAG}
    v_mov_b32 v6, v{CACC[1]}
    v_mov_b32 v7, {TAG}
    s_mov_b32 s6, 0x00ff00ff
    s_mov_b32 s7, 0x00ff00ff
    s_mov_b64 exec, s[6:7]
    buffer_store_dwordx4 v[4:7], v3, {WS}, s4 offen sc1
    s_mov_b64 exec, -1
    """)
    stamp(1)
    A.label(lnop1)
    A(f"""
    v_lshrrev_b32 v3, 4, v0
    v_mul_u32_u24 v3, 2560, v3          ; 2g*1280
    v_and_b32 v4, 15, v0
    v_lshl_add_u32 v3, v4, 4, v3
    v_cmp_gt_u32 vcc, 10, v4
    v_mov_b32 v5, 0x7fffff00
    s_nop 0
    v_cndmask_b32 v3, v5, v3, vcc
    s_mul_i32 s26, {S_H}, {128*1280}
    s_mul_i32 s4, {S_C}, 160
    s_add_u32 s26, s26, s4
    s_mov_b32 s27, {L_WO}
    """)
    for n in range(16):
        for ab in range(2):
            A(f"s_mov_b32 m0, s27")
            A(f"s_add_u32 s4, s26, {(8*n+ab)*1280}")
            A(f"buffer_load_dwordx4 v3, s[20:23], s4 offen nt lds")
            A(f"s_add_u32 s27, s27, 1024")
            A(f"s_waitcnt vmcnt(2)")
    A(f"""
    s_waitcnt vmcnt(0)
    v_mov_b32 v4, 1
    ds_write_b32 v2, v4 offset:{L_FLAGWO}
    s_waitcnt lgkmcnt(0)
    """)
    flush_stamps([1])
    A("s_branch L_end")

    A.label("L_w9")
    srd(8, "wq")
    srd(12, "x")
    srd(20, "w1")
    srd(24, "w2")
    A(f"""
    v_mul_u32_u24 v3, 20, v0
    buffer_load_dwordx4 v[112:115], v3, s[12:15], 0 offen
    buffer_load_dword v116, v3, s[12:15], 0 offen offset:16
    v_lshlrev_b32 v3, 2, v0
    s_mul_i32 s4, {S_C}, 160
    buffer_load_dword v117, v3, s[12:15], s4 offen
    ; weights: row = 80c + 4i + l/16 ; offset = row*8192 + h*256 + (l%16)*16
    v_lshrrev_b32 v3, 4, v0
    v_lshlrev_b32 v3, 13, v3
    v_and_b32 v4, 15, v0
    v_lshl_add_u32 v3, v4, 4, v3
    s_mul_i32 s28, {S_C}, {80*8192}
    s_lshl_b32 s4, {S_H}, 8
    s_add_u32 s28, s28, s4
    """)
    for i in range(20):
        A(f"buffer_load_dwordx4 v[{WR+4*i}:{WR+3+4*i}], v3, s[8:11], s28 offen nt")
        A(f"s_add_u32 s28, s28, {4*8192}")
    A("s_barrier")
    A("s_waitcnt vmcnt(20)")
    for i in range(5):
        A(f"v_lshlrev_b32 v{120+2*i}, 16, v{112+i}")
        A(f"v_and_b32 v{121+2*i}, 0xffff0000, v{112+i}")
    A("v_add_f32 v130, v120, v121")
    for i in range(2, 10):
        A(f"v_add_f32 v130, v130, v{120+i}")
    allred_row([130])
    allred_x16_32(130, 131)
    A("v_mul_f32 v130, 0x3acccccd, v130")
    for i in range(10):
        A(f"v_sub_f32 v132, v{120+i}, v130")
        if i == 0:
            A("v_mul_f32 v131, v132, v132")
        else:
            A("v_fmac_f32 v131, v132, v132")
    allred_row([131])
    allred_x16_32(131, 132)
    A("v_mul_f32 v131, 0x3acccccd, v131")
    rnd2(130, 131, 130, 131, 132)
    A("v_add_f32 v131, 0x3727c5ac, v131")
    rnd(131, 131)
    A("v_sqrt_f32 v131, v131")
    A("s_nop 0")
    rnd(131, 131)
    A("v_rcp_f32 v132, v131")
    A("v_lshlrev_b32 v118, 16, v117")
    A("v_and_b32 v119, 0xffff0000, v117")
    for x in (118, 119):
        A(f"v_sub_f32 v{x}, v{x}, v130")
        rnd(x, x)
        A(f"v_mul_f32 v133, v{x}, v132")
        A(f"v_fma_f32 v134, -v133, v131, v{x}")
        A(f"v_fma_f32 v{x}, v134, v132, v133")
        rnd(x, x)
    A(f"""
    s_waitcnt vmcnt(0) lgkmcnt(0)
    s_add_u32 {TAG}, {TAG}, 1
    s_mul_i32 s28, {S_C}, 640
    s_add_u32 s28, s28, {G1}
    v_cmp_gt_u32 s[96:97], 40, v0
    """)
    A("v_mov_b32 v4, 0x7fffff00")
    A("s_nop 0")
    A("v_cndmask_b32 v4, v4, v1, s[96:97]")
    PL = 136
    lds = []
    tags = []
    for rg in range(4):
        for arr in range(2):
            r = PL + 8 * rg + 4 * arr
            lds.append(f"s_add_u32 s4, s28, {rg*3840*8 + arr*640*8}")
            lds.append(f"buffer_load_dwordx4 v[{r}:{r+3}], v4, {WS}, s4 offen sc1")
            tags += [(r + 1, "s[96:97]"), (r + 3, "s[96:97]")]
    poll(lds, tags, sleep=2)
    stamp(2)
    for rg in range(1, 4):
        for o in (0, 2, 4, 6):
            A(f"v_add_f32 v{PL+o}, v{PL+o}, v{PL+8*rg+o}")
    rnd2(PL, PL + 2, PL, PL + 2, 133)
    rnd2(PL + 4, PL + 6, PL + 4, PL + 6, 133)
    A(f"v_add_f32 v{PL+4}, 1.0, v{PL+4}")
    A(f"v_add_f32 v{PL+6}, 1.0, v{PL+6}")
    rnd2(PL + 4, PL + 6, PL + 4, PL + 6, 133)
    A(f"v_mul_f32 v118, v118, v{PL+4}")
    A(f"v_mul_f32 v119, v119, v{PL+6}")
    rnd2(118, 119, 118, 119, 133)
    A(f"v_add_f32 v118, v118, v{PL}")
    A(f"v_add_f32 v119, v119, v{PL+2}")
    A("v_cvt_pk_bf16_f32 v118, v118, v119")
    A(f"""
    v_and_b32 v5, 1, v0
    v_mul_u32_u24 v5, 40, v5
    v_lshrrev_b32 v6, 1, v0
    v_add_u32 v5, v5, v6
    v_lshlrev_b32 v5, 1, v5
    s_mov_b64 exec, s[96:97]
    ds_write_b16 v5, v118 offset:{L_P2}
    ds_write_b16_d16_hi v5, v118 offset:{L_P2+40}
    s_mov_b64 exec, -1
    v_lshrrev_b32 v5, 4, v0
    v_mul_u32_u24 v5, 40, v5
    s_waitcnt lgkmcnt(0)
    """)
    for i in range(5):
        A(f"ds_read_b64 v[{MU+2*i}:{MU+2*i+1}], v5 offset:{L_P2+8*i}")
    A("s_waitcnt lgkmcnt(0)")
    for j in range(10):
        gemv_pair(CACC, WR + 8 * j, WR + 8 * j + 4, MU + j, CT, CT + 2, first=(j == 0))
    red8to2(CACC)
    A(f"""
    v_and_b32 v3, 15, v0
    v_lshlrev_b32 v3, 3, v3
    v_lshrrev_b32 v4, 5, v0
    v_lshl_add_u32 v3, v4, 2, v3
    v_bfe_u32 v4, v0, 4, 1
    v_lshl_add_u32 v3, v4, 1, v3
    v_lshlrev_b32 v3, 3, v3
    s_lshl_b32 s4, s2, 10
    s_add_u32 s4, s4, {G2}
    v_mov_b32 v4, v{CACC[0]}
    v_mov_b32 v5, {TAG}
    v_mov_b32 v6, v{CACC[1]}
    v_mov_b32 v7, {TAG}
    buffer_store_dwordx4 v[4:7], v3, {WS}, s4 offen sc1
    """)
    stamp(3)
    lnm = A.newlabel("Lnomlp")
    A(f"""
    s_sub_u32 s35, s2, {MLP0}
    s_cmp_ge_u32 s35, {NMLP}
    s_cbranch_scc1 {lnm}
    ; w1: load n (0..39): row = 16n + l/4 ; offset = row*3456 + m*64 + (l%4)*16
    v_lshrrev_b32 v3, 2, v0
    v_mul_u32_u24 v3, 3456, v3
    v_and_b32 v4, 3, v0
    v_lshl_add_u32 v3, v4, 4, v3
    s_lshl_b32 s28, s35, 6
    s_mov_b32 s29, {L_W1}
    """)
    for n in range(40):
        A(f"s_mov_b32 m0, s29")
        A(f"s_add_u32 s4, s28, {16*n*3456}")
        A(f"buffer_load_dwordx4 v3, s[20:23], s4 offen nt lds")
        A(f"s_add_u32 s29, s29, 1024")
        A(f"s_waitcnt vmcnt(2)")
    A(f"""
    v_lshrrev_b32 v3, 4, v0
    v_mul_u32_u24 v3, 2560, v3
    v_and_b32 v4, 15, v0
    v_lshl_add_u32 v3, v4, 4, v3
    v_cmp_gt_u32 vcc, 10, v4
    v_mov_b32 v5, 0x7fffff00
    s_nop 0
    v_cndmask_b32 v3, v5, v3, vcc
    s_mul_i32 s28, s35, {32*1280}
    """)
    for w in range(8):
        for i in range(4):
            for ab in range(2):
                A(f"s_mov_b32 m0, s29")
                A(f"s_add_u32 s4, s28, {(8*i+ab)*1280 + 160*w}")
                A(f"buffer_load_dwordx4 v3, s[24:27], s4 offen nt lds")
                A(f"s_add_u32 s29, s29, 1024")
                A(f"s_waitcnt vmcnt(2)")
    A(f"""
    s_waitcnt vmcnt(0)
    v_mov_b32 v4, 1
    ds_write_b32 v2, v4 offset:{L_FLAGMLP}
    s_waitcnt lgkmcnt(0)
    """)
    A.label(lnm)
    flush_stamps([2, 3])
    A("s_branch L_end")

    A.label("L_w10")
    A(f"""
    v_lshlrev_b32 v3, 2, v0
    v_mov_b32 v4, 0
    s_mov_b64 exec, 0xffff
    ds_write_b32 v3, v4
    s_mov_b64 exec, -1
    s_waitcnt lgkmcnt(0)
    s_barrier
    s_add_u32 {TAG}, {TAG}, 1
    s_lshl_b32 s20, {S_H}, 13
    s_add_u32 s20, s20, {G2}
    s_add_u32 s21, s20, 4096
    """)
    lds = [f"buffer_load_dwordx4 v[{8+4*i}:{11+4*i}], v1, {WS}, {'s20' if i < 4 else 's21'} offen offset:{1024*(i%4)} sc1" for i in range(8)]
    tags = []
    for i in range(8):
        tags += [9 + 4 * i, 11 + 4 * i]
    poll(lds, tags, sleep=2)
    for i in range(1, 8):
        A(f"v_add_f32 v8, v8, v{8+4*i}")
        A(f"v_add_f32 v10, v10, v{10+4*i}")
    A(f"""
    v_cvt_pk_bf16_f32 v8, v8, v10
    ds_write_b32 v3, v8 offset:{L_Q}
    s_waitcnt lgkmcnt(0)
    v_mov_b32 v4, 1
    ds_write_b32 v2, v4 offset:{L_FLAGQ}
    """)
    stamp(4)
    lds_spin(2, L_CNTML, 8, 4)
    A(f"""
    v_and_b32 v4, 7, v0
    v_lshlrev_b32 v4, 3, v4
    ds_read_b64 v[8:9], v4 offset:{L_ML}
    s_waitcnt lgkmcnt(0)
    v_mov_b32 v10, v8
    """)

    def comb8(m, l, M, t):
        for mode in ("quad_perm:[1,0,3,2]", "quad_perm:[2,3,0,1]", "row_half_mirror"):
            A("s_nop 1")
            A(f"v_max_f32_dpp v{M}, v{M}, v{M} {mode} row_mask:0xf bank_mask:0xf")
        A(f"""
        s_nop 0
        v_sub_f32 v{t}, v{m}, v{M}
        v_mul_f32 v{t}, {LOG2E}, v{t}
        v_exp_f32 v{t}, v{t}
        s_nop 0
        v_mul_f32 v{l}, v{l}, v{t}
        """)
        for mode in ("quad_perm:[1,0,3,2]", "quad_perm:[2,3,0,1]", "row_half_mirror"):
            A("s_nop 1")
            A(f"v_add_f32_dpp v{l}, v{l}, v{l} {mode} row_mask:0xf bank_mask:0xf")
        A("s_nop 0")
    comb8(8, 9, 10, 11)
    A(f"""
    v_mov_b32 v12, v10
    v_mov_b32 v13, {TAG}
    v_mov_b32 v14, v9
    v_mov_b32 v15, {TAG}
    s_lshl_b32 s4, s2, 4
    s_add_u32 s4, s4, {G3}
    s_mov_b64 exec, 1
    buffer_store_dwordx4 v[12:15], v2, {WS}, s4 offen sc1
    s_mov_b64 exec, -1
    v_and_b32 v4, 7, v0
    v_lshlrev_b32 v4, 4, v4
    s_lshl_b32 s20, {S_H}, 7
    s_add_u32 s20, s20, {G3}
    """)
    poll([f"buffer_load_dwordx4 v[8:11], v4, {WS}, s20 offen sc1"], [9, 11], sleep=1)
    A("v_mov_b32 v9, v10")
    A("v_mov_b32 v10, v8")
    comb8(8, 9, 10, 11)
    A(f"""
    v_rcp_f32 v11, v9
    s_nop 0
    v_fma_f32 v12, -v11, v9, 1.0
    v_fma_f32 v11, v12, v11, v11
    ds_write_b64 v2, v[10:11] offset:{L_MLF}
    s_waitcnt lgkmcnt(0)
    v_mov_b32 v4, 1
    ds_write_b32 v2, v4 offset:{L_FLAGML}
    s_waitcnt lgkmcnt(0)
    """)
    stamp(6)
    flush_stamps([4, 6])
    A("s_branch L_end")

    A.label("L_w11")
    srd(12, "x")
    A(f"""
    s_waitcnt lgkmcnt(0)
    s_barrier
    s_add_u32 {TAG}, {TAG}, 1
    s_sub_u32 s35, s2, {RED0}
    s_cmp_lt_u32 s35, {NRED}
    s_cbranch_scc1 L_w11_red
    s_sub_u32 s35, s2, {MLP0}
    s_cmp_lt_u32 s35, {NMLP}
    s_cbranch_scc1 L_w11_mlp
    s_branch L_end
    """)
    A.label("L_w11_red")
    A(f"""
    v_lshrrev_b32 v3, 3, v0
    v_mul_u32_u24 v3, {640*8}, v3
    v_and_b32 v4, 7, v0
    v_lshl_add_u32 v3, v4, 4, v3
    v_cmp_gt_u32 s[26:27], 32, v0
    v_mov_b32 v5, 0x7fffff00
    s_nop 0
    v_cndmask_b32 v3, v5, v3, s[26:27]
    s_lshl_b32 s20, s35, 7
    s_add_u32 s20, s20, {G1 + 1280*8}
    ; x pair
    v_lshlrev_b32 v5, 2, v4
    s_lshl_b32 s4, s35, 5
    buffer_load_dword v30, v5, s[12:15], s4 offen
    """)
    lds = []
    tags = []
    for rg in range(4):
        lds.append(f"s_add_u32 s4, s20, {rg*3840*8}")
        lds.append(f"buffer_load_dwordx4 v[{8+4*rg}:{11+4*rg}], v3, {WS}, s4 offen sc1")
        tags += [(9 + 4 * rg, "s[26:27]"), (11 + 4 * rg, "s[26:27]")]
    poll(lds, tags, sleep=4)
    for rg in range(1, 4):
        A(f"v_add_f32 v8, v8, v{8+4*rg}")
        A(f"v_add_f32 v10, v10, v{10+4*rg}")
    rnd2(8, 9, 8, 10, 12)
    A(f"""
    v_lshlrev_b32 v5, 3, v0
    s_mov_b64 exec, s[26:27]
    ds_write_b64 v5, v[8:9] offset:{L_X1}
    s_mov_b64 exec, -1
    v_lshlrev_b32 v5, 3, v4            ; pair*8
    s_waitcnt lgkmcnt(0)
    ds_read_b64 v[8:9], v5 offset:{L_X1}          ; ga
    ds_read_b64 v[10:11], v5 offset:{L_X1+64}     ; sb
    ds_read_b64 v[12:13], v5 offset:{L_X1+128}    ; cb
    ds_read_b64 v[14:15], v5 offset:{L_X1+192}    ; gb
    v_lshlrev_b32 v16, 16, v30
    v_and_b32 v17, 0xffff0000, v30
    s_waitcnt lgkmcnt(0)
    ds_write_b64 v5, v[8:9] offset:{L_RED}
    ds_write_b64 v5, v[14:15] offset:{L_RED+64}
    ds_write_b64 v5, v[16:17] offset:{L_RED+128}
    v_add_f32 v12, 1.0, v12
    v_add_f32 v13, 1.0, v13
    v_cvt_pk_bf16_f32 v20, v12, v10
    v_cvt_pk_bf16_f32 v22, v13, v11
    v_mov_b32 v21, {TAG}
    v_mov_b32 v23, {TAG}
    s_lshl_b32 s4, s35, 7
    s_add_u32 s4, s4, {G7}
    s_mov_b64 exec, 0xff
    buffer_store_dwordx4 v[20:23], v1, {WS}, s4 offen sc1
    s_mov_b64 exec, -1
    s_waitcnt lgkmcnt(0)
    v_mov_b32 v4, 1
    ds_write_b32 v2, v4 offset:{L_FLAGMOD}
    s_waitcnt lgkmcnt(0)
    s_branch L_end
    """)
    A.label("L_w11_mlp")
    A(f"s_mov_b32 s21, {G7}")
    A(f"s_mov_b32 s22, {G7+4096}")
    lds = [f"buffer_load_dwordx4 v[{8+4*i}:{11+4*i}], v1, {WS}, s21 offen offset:{1024*i} sc1" for i in range(4)]
    lds += [f"buffer_load_dwordx4 v[24:27], v1, {WS}, s22 offen sc1"]
    poll(lds, [9, 11, 13, 15, 17, 19, 21, 23, 25, 27], sleep=4)
    A("v_lshlrev_b32 v4, 3, v0")
    for i in range(5):
        A(f"v_mov_b32 v{9+4*i}, v{10+4*i}")
    for i in range(5):
        A(f"ds_write_b64 v4, v[{8+4*i}:{9+4*i}] offset:{L_CS + 512*i}")
    A(f"""
    s_waitcnt lgkmcnt(0)
    v_mov_b32 v4, 1
    ds_write_b32 v2, v4 offset:{L_FLAGMOD}
    s_waitcnt lgkmcnt(0)
    """)
    A.label("L_end")
    A("s_endpgm")
    A.end_kernel(kn, vgpr=168, sgpr=102)
    open(fname, "w").write(A.text([f"; @launch grid=(256,1,1) block=(768,1,1) lds={LDS_SIZE}"]))


if __name__ == "__main__":
    out = sys.argv[1] if len(sys.argv) > 1 else "v1.s"
    ts = not (len(sys.argv) > 2 and sys.argv[2] == "nots")
    gen(out, TS=ts)
    print(out)
```
